```python
import torch

def _softmax(x, axis=-1):
    return torch.softmax(x, dim=axis)
def _gelu(x):
    return torch.nn.functional.gelu(x, approximate="tanh")
def _silu(x):
    return torch.nn.functional.silu(x)
def _sigmoid(x):
    return torch.sigmoid(x)
def _layernorm(x, axis=-1, eps=1e-5):
    m = x.mean(dim=axis, keepdim=True)
    v = x.var(dim=axis, keepdim=True, unbiased=False)
    return (x - m) / torch.sqrt(v + eps)
def _scatter_add(tgt, idx, src, axis=0):
    return tgt.clone().index_add_(axis, idx, src)
def _segment_sum(src, seg, n):
    out = torch.zeros((n,) + src.shape[1:], dtype=src.dtype)
    return out.index_add_(0, seg, src)
def _pad(x, pw):
    flat = tuple(v for pair in reversed(pw) for v in pair)
    return torch.nn.functional.pad(x, flat)

kernel_name = 'parallel_sum__mha_block__mixer_s_mlp__prompt'

def setup_inputs():

    _w = (lambda a: (lambda t: t.to(torch.bfloat16) if t.is_floating_point() else t)(torch.as_tensor(a)))
    def _A_setup():
        B, S, D, H = 1, 2048, 640, 32
        return {
            "x": _w((lambda *s: torch.randn(*s, dtype=torch.bfloat16) * 0.05)(B, S, D)),
            "wqkv": _w((lambda *s: torch.randn(*s, dtype=torch.bfloat16) * 0.05)(D, 3 * D)),
            "wo": _w((lambda *s: torch.randn(*s, dtype=torch.bfloat16) * 0.05)(D, D)),
        }
    _A_in = _A_setup()

    def _B_setup():
        B, S, D, F = 1, 2048, 640, 1536
        return {
            "x":  _w((lambda *s: torch.randn(*s, dtype=torch.bfloat16) * 0.05)(B, S, D)),
            "w1": _w((lambda *s: torch.randn(*s, dtype=torch.bfloat16) * 0.8)(D, D) * (D ** -0.5)),
            "w2": _w((lambda *s: torch.randn(*s, dtype=torch.bfloat16) * 0.8)(D, D) * (D ** -0.5)),
            "w3": _w((lambda *s: torch.randn(*s, dtype=torch.bfloat16) * 0.8)(D, F) * (D ** -0.5)),
            "w4": _w((lambda *s: torch.randn(*s, dtype=torch.bfloat16) * 0.8)(F, D) * (F ** -0.5)),
        }
    _B_in = _B_setup()

    return {
        "A_x": _A_in["x"],
        "A_wqkv": _A_in["wqkv"],
        "A_wo": _A_in["wo"],
        "B_x": _B_in["x"],
        "B_w1": _B_in["w1"],
        "B_w2": _B_in["w2"],
        "B_w3": _B_in["w3"],
        "B_w4": _B_in["w4"],
    }

def reference(A_x, A_wqkv, A_wo, B_x, B_w1, B_w2, B_w3, B_w4):
    def _A_ref(x, wqkv, wo):
        B, S, D = x.shape
        H = 32
        Dh = D // H
        qkv = (lambda x, *d: x.permute(*d))((x @ wqkv).reshape(B, S, 3, H, Dh), 2, 0, 3, 1, 4)
        q, k, v = qkv[0], qkv[1], qkv[2]
        scores = torch.einsum("bhqd,bhkd->bhqk", q, k) * (Dh ** -0.5)
        p = _softmax(scores, axis=-1)
        o = torch.einsum("bhqk,bhkd->bhqd", p, v)
        return (lambda x, *d: x.permute(*d))(o, 0, 2, 1, 3).reshape(B, S, D) @ wo

    def _B_ref(x, w1, w2, w3, w4):
        B, S, D = x.shape
        h = _gelu(_layernorm(x, axis=-1) @ w1)
        c = D // 4
        g0 = _pad(h[:, :, 0*c:1*c], ((0, 0), (1, 0), (0, 0)))[:, :S, :]
        g1 = _pad(h[:, :, 1*c:2*c], ((0, 0), (0, 1), (0, 0)))[:, 1:, :]
        g2 = _pad(h[:, :, 2*c:3*c], ((0, 0), (2, 0), (0, 0)))[:, :S, :]
        g3 = _pad(h[:, :, 3*c:   ], ((0, 0), (0, 2), (0, 0)))[:, 2:, :]
        hs = torch.concatenate([g0, g1, g2, g3], axis=-1) @ w2
        x1 = x + hs
        h2 = _gelu(_layernorm(x1, axis=-1) @ w3) @ w4
        return x1 + h2

    x = A_x
    xn = _layernorm(x, axis=-1)
    return x + _A_ref(xn, A_wqkv, A_wo) + _B_ref(xn, B_w1, B_w2, B_w3, B_w4)
```

```python
import re

TRANS = ("v_exp_f32","v_log_f32","v_rcp_f32","v_rsq_f32","v_sqrt_f32","v_sin_f32","v_cos_f32","v_exp_f16","v_rcp_f16","v_rcp_iflag_f32")

class Asm:
    def __init__(self):
        self.lines = []
    def __call__(self, s):
        for l in s.split("\n"):
            l = l.rstrip()
            if l.strip():
                self.lines.append(l if (l.lstrip().startswith((".", ";")) or l.rstrip().endswith(":")) else "    " + l.strip())
    def label(self, name): self.lines.append(name + ":")
    def comment(self, s): self.lines.append("    ; " + s)
    def nop(self, n):
        while n > 0:
            k = min(n, 16); self.lines.append(f"    s_nop {k-1}"); n -= k
    def text(self): return "\n".join(self.lines) + "\n"

def interleave(primary, fillers, start=0, every=1):
    out = []; fi = 0
    for i, p in enumerate(primary):
        out.append(p)
        if i >= start and (i - start) % every == 0 and fi < len(fillers):
            out += fillers[fi]; fi += 1
    while fi < len(fillers):
        out += fillers[fi]; fi += 1
    return out

def spread(primary, fillers):
    n, m = len(primary), len(fillers)
    out = []; fi = 0
    for i, p in enumerate(primary):
        out.append(p)
        want = ((i + 1) * m) // n
        while fi < want:
            out += fillers[fi]; fi += 1
    return out

_reg = re.compile(r"^(-|\|)?(?:abs\(|neg\()?([vsa])(?:(\d+)|\[(\d+):(\d+)\])\)?\|?$")
def regs(tok):
    tok = tok.strip()
    if tok in ("vcc",): return {("s",106),("s",107)}
    if tok == "vcc_lo": return {("s",106)}
    if tok == "vcc_hi": return {("s",107)}
    if tok == "exec": return {("s",126),("s",127)}
    if tok == "exec_lo": return {("s",126)}
    if tok == "exec_hi": return {("s",127)}
    if tok == "m0": return {("s",124)}
    m = _reg.match(tok)
    if not m: return set()
    f = m.group(2)
    if m.group(3) is not None: lo = hi = int(m.group(3))
    else: lo, hi = int(m.group(4)), int(m.group(5))
    return {(f, i) for i in range(lo, hi + 1)}

class Ins:
    __slots__ = ("text","op","ops","kind","wr","rd","nws","mods","passes","srcC","dst_first","line")
def parse(line):
    t = line.split(";")[0].split("//")[0].strip()
    if not t or t.endswith(":") or t.startswith("."): return None
    parts = t.split(None, 1)
    op = parts[0]; rest = parts[1] if len(parts) > 1 else ""
    ops = []; cur = ""; depth = 0
    for ch in rest:
        if ch == "[": depth += 1
        if ch == "]": depth -= 1
        if ch == "," and depth == 0: ops.append(cur.strip()); cur = ""
        else: cur += ch
    if cur.strip(): ops.append(cur.strip())
    mods = ""
    if ops:
        sp = ops[-1].split(None, 1)
        if len(sp) > 1: ops[-1] = sp[0]; mods = sp[1]
    I = Ins(); I.text = t; I.op = op; I.ops = ops; I.mods = mods; I.nws = 1; I.passes = 0; I.srcC = set()
    wr = set(); rd = set()
    base = op.replace("_e32","").replace("_e64","").replace("_sdwa","").replace("_dpp","")
    if op.startswith("v_mfma"):
        I.kind = "mfma"; I.passes = 8 if "32x32" in op else 4
        wr = regs(ops[0]); rd = regs(ops[1]) | regs(ops[2]) | regs(ops[3]); I.srcC = regs(ops[3])
    elif op.startswith("v_cmp"):
        I.kind = "valu"; wr = regs(ops[0]); rd = set().union(*[regs(o) for o in ops[1:]])
    elif op.startswith(("v_readfirstlane","v_readlane")):
        I.kind = "valu"; wr = regs(ops[0]); rd = set().union(*[regs(o) for o in ops[1:]])
    elif op.startswith("v_permlane") and "swap" in op:
        I.kind = "valu"; wr = regs(ops[0]) | regs(ops[1]); rd = set(wr)
    elif op.startswith("v_"):
        I.kind = "trans" if base in TRANS else "valu"
        wr = regs(ops[0]); rd = set().union(*[regs(o) for o in ops[1:]]) if len(ops) > 1 else set()
        if base in ("v_add_co_u32","v_sub_co_u32","v_addc_co_u32","v_subb_co_u32"):
            wr |= regs(ops[1]); rd = set().union(*[regs(o) for o in ops[2:]])
        if base in ("v_fmac_f32","v_dot2c_f32_bf16","v_pk_fmac_f16","v_mac_f32") or "UNUSED_PRESERVE" in mods: rd |= regs(ops[0])
        if base == "v_cndmask_b32" and len(ops) == 3: rd |= regs("vcc")
    elif op.startswith(("buffer_","global_","flat_")):
        I.kind = "vmem"
        allr = set().union(*[regs(o) for o in ops]) if ops else set()
        if "load" in op and " lds" not in (" " + mods) and "load_lds" not in op:
            wr = regs(ops[0]); rd = set().union(*[regs(o) for o in ops[1:]])
        elif "atomic" in op and "sc0" in mods:
            wr = regs(ops[0]); rd = allr
        else:
            rd = allr
        if (" lds" in (" " + mods)) or "load_lds" in op: rd |= regs("m0")
    elif op.startswith("ds_"):
        I.kind = "ds"
        if op.startswith(("ds_read","ds_bpermute","ds_permute","ds_swizzle")):
            wr = regs(ops[0]); rd = set().union(*[regs(o) for o in ops[1:]])
        else:
            rd = set().union(*[regs(o) for o in ops])
    elif op == "s_nop":
        I.kind = "nop"; I.nws = int(ops[0], 0) + 1
    elif op.startswith(("s_load","s_memtime","s_memrealtime")):
        I.kind = "smem"; wr = regs(ops[0]); rd = set().union(*[regs(o) for o in ops[1:]]) if len(ops) > 1 else set()
    elif op.startswith(("s_cmp","s_cbranch","s_branch","s_waitcnt","s_barrier","s_endpgm","s_setprio","s_sleep","s_bitcmp","s_set_gpr_idx")):
        I.kind = "sctl"; rd = set().union(*[regs(o) for o in ops]) if ops else set()
    elif op.startswith("s_"):
        I.kind = "salu"; wr = regs(ops[0]); rd = set().union(*[regs(o) for o in ops[1:]]) if len(ops) > 1 else set()
        if "saveexec" in op: wr |= regs("exec"); rd |= regs("exec")
    else:
        raise ValueError("unknown instr: " + line)
    I.wr = wr; I.rd = rd
    return I

def check_seq(seq, report):
    for i, C in enumerate(seq):
        dist = 0
        for j in range(i - 1, -1, -1):
            P = seq[j]
            def need(n, why):
                if dist < n: report(P, C, n, dist, why)
            vw = {r for r in P.wr if r[0] in "va"}; sw = {r for r in P.wr if r[0] == "s"}
            cvr = {r for r in C.rd if r[0] in "va"}; csr = {r for r in C.rd if r[0] == "s"}
            cvw = {r for r in C.wr if r[0] in "va"}
            if P.kind in ("valu","trans"):
                if C.kind == "mfma" and vw & cvr: need(2, "VALU->MFMA operand")
                if P.kind == "trans" and C.kind in ("valu","mfma") and vw & cvr: need(1, "trans->VALU")
                if C.op.startswith(("v_readfirstlane","v_readlane")) and vw & cvr: need(1, "VALU->readlane")
                if C.kind in ("valu","trans") and ("row_" in C.mods or "quad_perm" in C.mods or "_dpp" in C.op) and vw & cvr: need(2, "VALU->DPP")
                if C.op.startswith("v_permlane") and vw & cvr: need(2, "VALU->permlane")
                if sw:
                    if C.kind == "vmem" and sw & csr: need(5, "VALU sgpr->VMEM")
                    if C.kind in ("valu","trans") and sw & csr: need(2, "VALU sgpr->VALU const")
                    if C.op.startswith(("v_readlane","v_writelane")) and sw & regs(C.ops[-1]): need(4, "VALU sgpr->lane sel")
                if ("sdwa" in P.op or "op_sel" in P.mods) and C.kind in ("valu","trans") and vw & (cvr | cvw) and not P.op.startswith("v_pk") and not P.op.startswith("v_mfma"): need(1, "sdwa/opsel->VALU")
            if P.kind == "mfma":
                D = P.wr; p = P.passes
                if C.kind == "mfma":
                    if C.srcC & D:
                        if not (C.srcC == D and C.passes == p): need({4:6, 8:10}[p], "MFMA D->MFMA C overlap")
                    ab = regs(C.ops[1]) | regs(C.ops[2])
                    if ab & D: need({4:8, 8:12}[p], "MFMA D->MFMA A/B")
                    if (C.wr & D) and not (C.srcC == D): need({4:8, 8:12}[p], "MFMA D->MFMA WAW(non chain)") if False else None
                elif C.kind in ("valu","trans"):
                    if (cvr | cvw) & D: need({4:8, 8:12}[p], "MFMA D->VALU")
                    if cvw & P.srcC and not (cvw & D): need({4:3, 8:7}[p], "MFMA srcC WAR")
                elif C.kind in ("vmem","ds"):
                    if (cvr | cvw) & D: need({4:8, 8:12}[p], "MFMA D->VMEM/DS")
            if P.kind == "salu" and ("s",124) in P.wr and C.kind == "vmem" and ("s",124) in C.rd: need(1, "m0->LDS DMA")
            if P.kind == "vmem" and ("store" in P.op) and ("x3" in P.op or "x4" in P.op) and C.kind in ("valu","trans"):
                data = regs(P.ops[0]) if P.op.startswith("buffer") else regs(P.ops[1])
                if data & cvw: need(2, "store data WAR")
            dist += P.nws
            if dist >= 20: break

def check(lines):
    ins = []; labels = {}
    items = []
    for l in lines:
        s = l.split(";")[0].strip()
        if s.endswith(":") and not s.startswith("."):
            labels[s[:-1]] = len(items); continue
        I = parse(l)
        if I is not None: items.append(I)
    problems = []
    def report(P, C, n, d, why): problems.append(f"{why}: need {n} have {d}: [{P.text}] -> [{C.text}]")
    check_seq(items, report)
    for i, I in enumerate(items):
        if I.op.startswith(("s_cbranch","s_branch")):
            tgt = labels.get(I.ops[0])
            if tgt is None: continue
            pre = items[max(0, i - 24):i + 1]; post = items[tgt:tgt + 24]
            if tgt == i + 1: continue
            n0 = len(pre)
            seq = pre + post
            def rep2(P, C, n, d, why, pre=pre, post=post):
                if any(P is x for x in pre) and any(C is x for x in post): report(P, C, n, d, "[via branch] " + why)
            check_seq(seq, rep2)
    return sorted(set(problems))
```

```python
from asmlib import *
import math

S=2048; D=640; F=1536; NH=32; DH=20
WS_XN   = 0x0
WS_XN2  = 0x280000
WS_Q    = 0x500000
WS_H    = 0x780000
WS_X1   = 0xA00000
WS_O    = 0xC80000
WS_G    = 0xF00000
WS_KV   = 0x1500000
KV_TILE = 2688
KV_HEAD = 64*KV_TILE
WS_KV_SIZE = 32*KV_HEAD
WS_ST   = 0x1A40000
ACT_BYTES = S*D*2
KA = dict(x=0, wqkv=8, wo=16, bx=24, w1=32, w2=40, w3=48, w4=56, out=64, dbg=72, ws=80)

def f32bits(x):
    import struct
    return struct.unpack("<I", struct.pack("<f", x))[0]
def hexf(x): return "0x%08x" % f32bits(x)

LOG2E = 1.4426950408889634
GELU_C0 = -2.0*math.sqrt(2.0/math.pi)*LOG2E
GELU_C1 = GELU_C0*0.044715
QSCALE = LOG2E/math.sqrt(DH)

def kernel_header(a, name):
    a(f".globl {name}")
    a(f".p2align 8")
    a(f".type {name},@function")
    a.label(name)

def kernel_desc(name, nvgpr, nsgpr=96, accum=None):
    accum = accum or ((nvgpr+3)//4*4)
    return f""".amdhsa_kernel {name}
  .amdhsa_next_free_vgpr {nvgpr}
  .amdhsa_next_free_sgpr {nsgpr}
  .amdhsa_accum_offset {accum}
  .amdhsa_group_segment_fixed_size 0
  .amdhsa_kernarg_size 88
  .amdhsa_user_sgpr_count 2
  .amdhsa_user_sgpr_kernarg_segment_ptr 1
  .amdhsa_system_sgpr_workgroup_id_x 1
  .amdhsa_float_denorm_mode_32 3
.end_amdhsa_kernel
"""

def srd(a, s, ptr_lo, off, size):
    if off:
        a(f"s_add_u32 s{s}, s{ptr_lo}, {hex(off)}")
        a(f"s_addc_u32 s{s+1}, s{ptr_lo+1}, 0")
    else:
        a(f"s_mov_b32 s{s}, s{ptr_lo}")
        a(f"s_mov_b32 s{s+1}, s{ptr_lo+1}")
    a(f"s_mov_b32 s{s+2}, {hex(size)}")
    a(f"s_mov_b32 s{s+3}, 0x00020000")

class VA:
    def __init__(self, start=1): self.n = start
    def get(self, cnt=1, align=1):
        self.n = (self.n + align - 1)//align*align
        r = self.n; self.n += cnt; return r

def gelu_pairs(a, pairs, tmp, sC0, sC1):
    n = len(pairs)
    for i,p in enumerate(pairs):
        t = tmp+2*i
        a(f"v_pk_mul_f32 v[{t}:{t+1}], v[{p}:{p+1}], v[{p}:{p+1}]")
    for i,p in enumerate(pairs):
        t = tmp+2*i
        a(f"v_pk_fma_f32 v[{t}:{t+1}], v[{t}:{t+1}], s[{sC1}:{sC1+1}], v[CC0:CC0p1]".replace("v[CC0:CC0p1]", f"v[{sC0}:{sC0+1}]"))
    for i,p in enumerate(pairs):
        t = tmp+2*i
        a(f"v_pk_mul_f32 v[{t}:{t+1}], v[{t}:{t+1}], v[{p}:{p+1}]")
    for i,p in enumerate(pairs):
        t = tmp+2*i
        a(f"v_exp_f32 v{t}, v{t}")
        a(f"v_exp_f32 v{t+1}, v{t+1}")
    if n == 1: a("s_nop 0")
    for i,p in enumerate(pairs):
        t = tmp+2*i
        a(f"v_pk_add_f32 v[{t}:{t+1}], v[{t}:{t+1}], 1.0 op_sel_hi:[1,0]")
    for i,p in enumerate(pairs):
        t = tmp+2*i
        a(f"v_rcp_f32 v{t}, v{t}")
        a(f"v_rcp_f32 v{t+1}, v{t+1}")
    if n == 1: a("s_nop 0")
    for i,p in enumerate(pairs):
        t = tmp+2*i
        a(f"v_pk_mul_f32 v[{p}:{p+1}], v[{t}:{t+1}], v[{p}:{p+1}]")
```

```python
from common import *

class Gemm:
    def __init__(self, name, BM, BN, mode, NS, T, browb, va):
        self.name=name; self.BM=BM; self.BN=BN; self.mode=mode; self.NS=NS; self.T=T
        self.browb = browb
        self.Abytes = BM*128; self.Bbytes = 64*browb
        self.slot = self.Abytes + self.Bbytes
        self.nA = self.Abytes//4096; self.nB = self.Bbytes//4096
        assert self.Abytes % 4096 == 0 and self.Bbytes % 4096 == 0
        self.nDMA = self.nA + self.nB
        self.MB = BM//32
        self.NB = (BN//32) if mode=='2x2' else (BN//16)
        self.va = va
        self.vAoff = [va.get() for _ in range(self.nA)]
        self.vBoff = [va.get() for _ in range(self.nB)]
        self.aA = [va.get(), va.get()]
        self.aB = [va.get(), va.get()]
        fr = (self.MB + self.NB)*4
        self.fX = va.get(fr, 4); self.fY = va.get(fr, 4)
        self.acc = va.get(self.MB*self.NB*4, 4)
        self.lds = self.slot*NS

    def accreg(self, mb, nb): return self.acc + (mb*self.NB + nb)*4

    def setup_lane(self, a, vt0, vt1, vt2, vt3):
        a("v_lshrrev_b32 v%d, 6, v0" % vt0)
        a("s_nop 0")
        a("v_readfirstlane_b32 s26, v%d" % vt0)
        a("v_and_b32 v0, 63, v0")
        a("s_lshr_b32 s28, s26, 1")
        a("s_and_b32 s29, s26, 1")

    def setup_dma_A(self, a, srow0, lda2, vt0, vt1, vt2):
        a(f"v_lshrrev_b32 v{vt0}, 3, v0")
        a(f"s_lshl_b32 s30, s26, 3")
        a(f"v_add_u32 v{vt0}, s30, v{vt0}")
        a(f"v_lshrrev_b32 v{vt1}, 1, v{vt0}")
        a(f"v_xor_b32 v{vt1}, v{vt1}, v0")
        a(f"v_and_b32 v{vt1}, 7, v{vt1}")
        a(f"v_add_u32 v{vt0}, {srow0}, v{vt0}")
        a(f"s_mov_b32 s30, {lda2}")
        a(f"v_mul_lo_u32 v{vt2}, v{vt0}, s30")
        a(f"v_lshl_add_u32 v{self.vAoff[0]}, v{vt1}, 4, v{vt2}")
        for m in range(1, self.nA):
            a(f"v_add_u32 v{self.vAoff[m]}, {hex(32*m*lda2)}, v{self.vAoff[0]}")

    def setup_dma_B(self, a, sldb2, scol2, nchunk_valid, vt0, vt1, vt2, vt3):
        cpr = self.browb//16
        magic = (1 << 20)//cpr + 1
        for m in range(self.nB):
            d = self.vBoff[m]
            a(f"s_lshl_b32 s30, s26, 6")
            a(f"s_add_u32 s30, s30, {256*m}")
            a(f"v_add_u32 v{vt0}, s30, v0")
            a(f"v_mul_u32_u24 v{vt1}, {hex(magic)}, v{vt0}")
            a(f"v_lshrrev_b32 v{vt1}, 20, v{vt1}")
            a(f"v_mul_u32_u24 v{vt2}, {cpr}, v{vt1}")
            a(f"v_sub_u32 v{vt2}, v{vt0}, v{vt2}")
            a(f"v_lshrrev_b32 v{vt3}, 2, v{vt1}")
            a(f"v_and_b32 v{vt3}, 2, v{vt3}")
            a(f"v_xor_b32 v{vt2}, v{vt2}, v{vt3}")
            a(f"v_mul_lo_u32 v{vt1}, v{vt1}, {sldb2}")
            a(f"v_lshl_add_u32 v{d}, v{vt2}, 4, v{vt1}")
            a(f"v_add_u32 v{d}, {scol2}, v{d}")
            if nchunk_valid < cpr:
                a(f"v_cmp_le_u32 vcc, {nchunk_valid}, v{vt2}")
                a(f"v_mov_b32 v{vt3}, 0x7ffffff0")
                a("s_nop 0")
                a(f"v_cndmask_b32 v{d}, v{d}, v{vt3}, vcc")
        for Q in range(64*4*self.nB):
            assert (Q*magic) >> 20 == Q//cpr and Q*magic < (1<<32) and magic < (1<<24)

    def setup_reads(self, a, vt0, vt1, vt2):
        a(f"v_and_b32 v{vt0}, 15, v0")
        a(f"v_lshrrev_b32 v{vt1}, 4, v0")
        a(f"v_lshrrev_b32 v{vt2}, 1, v{vt0}")
        a(f"v_xor_b32 v{vt2}, v{vt2}, v{vt1}")
        a(f"s_mul_i32 s30, s28, {self.BM//2}")
        a(f"v_add_u32 v{vt0}, s30, v{vt0}")
        a(f"v_lshlrev_b32 v{vt0}, 7, v{vt0}")
        a(f"v_lshl_add_u32 v{self.aA[0]}, v{vt2}, 4, v{vt0}")
        a(f"v_xor_b32 v{self.aA[1]}, 64, v{self.aA[0]}")
        if self.mode == 'ks':
            a(f"s_lshl_b32 s30, s29, 6")
            a(f"v_xor_b32 v{self.aA[0]}, s30, v{self.aA[0]}")
        a(f"v_lshrrev_b32 v{vt0}, 2, v0")
        a(f"v_and_b32 v{vt0}, 3, v{vt0}")
        a(f"v_lshl_add_u32 v{vt0}, v{vt1}, 3, v{vt0}")
        a(f"v_mul_u32_u24 v{vt0}, {self.browb}, v{vt0}")
        a(f"v_and_b32 v{vt2}, 3, v0")
        a(f"v_lshl_add_u32 v{vt0}, v{vt2}, 3, v{vt0}")
        a(f"v_add_u32 v{vt0}, {self.Abytes}, v{vt0}")
        a(f"v_and_b32 v{vt1}, 1, v{vt1}")
        a(f"v_lshlrev_b32 v{vt1}, 5, v{vt1}")
        if self.mode == '2x2':
            a(f"s_mul_i32 s30, s29, {self.NB*32}")
            a(f"v_add_u32 v{vt0}, s30, v{vt0}")
            if self.NB % 2 == 1:
                a(f"s_lshl_b32 s30, s29, 1")
                a(f"s_sub_u32 s30, 1, s30")
                a(f"v_mul_lo_u32 v{vt1}, v{vt1}, s30")
            a(f"v_add_u32 v{self.aB[0]}, v{vt0}, v{vt1}")
            a(f"v_sub_u32 v{self.aB[1]}, v{vt0}, v{vt1}")
        else:
            a(f"s_mul_i32 s30, s29, {32*self.browb}")
            a(f"v_add_u32 v{vt0}, s30, v{vt0}")
            a(f"v_add_u32 v{self.aB[0]}, v{vt0}, v{vt1}")
            a(f"v_sub_u32 v{self.aB[1]}, v{vt0}, v{vt1}")

    def reads(self, f, s):
        L=[]
        for mb in range(self.MB):
            r = f + 4*mb
            aA = self.aA[s] if self.mode=='2x2' else self.aA[0]
            L.append(f"ds_read_b128 v[{r}:{r+3}], v{aA} offset:{mb*2048}")
        for nb in range(self.NB):
            r = f + 4*self.MB + 4*nb
            for jh in range(2):
                off = nb*32 + (4*jh + (32*s if self.mode=='2x2' else 0))*self.browb
                L.append(f"ds_read_b64_tr_b16 v[{r+2*jh}:{r+2*jh+1}], v{self.aB[nb&1]} offset:{off}")
        return L

    def mfmas(self, f, swapped, extra=None):
        L=[]
        for nb in range(self.NB):
            for mb in range(self.MB):
                xa = f + 4*mb; wb = f + 4*self.MB + 4*nb; c = self.accreg(mb, nb)
                if swapped: L.append(f"v_mfma_f32_16x16x32_bf16 v[{c}:{c+3}], v[{wb}:{wb+3}], v[{xa}:{xa+3}], v[{c}:{c+3}]")
                else:       L.append(f"v_mfma_f32_16x16x32_bf16 v[{c}:{c+3}], v[{xa}:{xa+3}], v[{wb}:{wb+3}], v[{c}:{c+3}]")
            if extra: L += extra(f, nb)
        return L

    def dma_groups(self, preA=None):
        G=[]
        for m in range(self.nA):
            pre = preA(m) if preA else []
            va_, so = (self.vAoff[m], "s21") if not preA else preA.addr(m)
            G.append(pre + [f"s_add_u32 m0, s24, {m*4096}", "s_nop 0", f"buffer_load_dwordx4 v{va_}, s[4:7], {so} offen lds"])
        for m in range(self.nB):
            G.append([f"s_add_u32 m0, s24, {self.Abytes + m*4096}", "s_nop 0", f"buffer_load_dwordx4 v{self.vBoff[m]}, s[8:11], s22 offen lds"])
        return G

    def dma_advance(self, advA):
        L = list(advA)
        L += ["s_add_u32 s22, s22, s23",
              "s_add_u32 s20, s20, 1",
              f"s_add_u32 s31, s31, 1",
              f"s_add_u32 s24, s24, {self.slot}",
              f"s_cmp_eq_u32 s31, {self.NS}",
              f"s_cselect_b32 s30, {self.slot*self.NS}, 0",
              f"s_cselect_b32 s31, 0, s31",
              f"s_sub_u32 s24, s24, s30",
              f"s_cmp_lt_u32 s20, {self.T}",
              f"s_cselect_b32 s6, s6, 0",
              f"s_cselect_b32 s10, s10, 0",
              f"s_cselect_b32 s21, s21, 0",
              f"s_cselect_b32 s22, s22, 0"]
        return L

    def read_advance(self):
        L = [f"s_add_u32 s27, s27, 1",
             f"s_cmp_eq_u32 s27, {self.NS}",
             f"s_mov_b32 s25, {self.slot}",
             f"s_cselect_b32 s25, {(-(self.NS-1)*self.slot) & 0xffffffff:#x}, s25",
             f"s_cselect_b32 s27, 0, s27"]
        rs = (self.aA if self.mode=='2x2' else self.aA[:1]) + self.aB
        for r in rs: L.append(f"v_add_u32 v{r}, s25, v{r}")
        return L

    def zero_acc(self, a):
        for i in range(self.MB*self.NB*4): a(f"v_mov_b32 v{self.acc+i}, 0")

    def prologue(self, a, advA, preA=None):
        a("s_mov_b32 s20, 0"); a("s_mov_b32 s27, 0"); a("s_mov_b32 s31, 0")
        a("s_lshl_b32 s24, s26, 10")
        a(f"s_mov_b32 s19, {self.NS}")
        a.label(f"{self.name}_pro")
        for g in self.dma_groups(preA):
            for l in g: a(l)
        for l in self.dma_advance(advA): a(l)
        a("s_sub_u32 s19, s19, 1"); a("s_cmp_lg_u32 s19, 0"); a(f"s_cbranch_scc1 {self.name}_pro")
        self.zero_acc(a)
        a(f"s_waitcnt vmcnt({(self.NS-1)*self.nDMA})")
        a("s_barrier")
        for l in self.reads(self.fX, 0): a(l)

    def loop(self, a, swapped, advA, label, preA=None, extra=None):
        wait = f"s_waitcnt vmcnt({(self.NS-2)*self.nDMA}) lgkmcnt(0)"
        if self.mode == '2x2':
            a(f"s_mov_b32 s19, {self.T}")
            a.label(label)
            a("s_waitcnt lgkmcnt(0)")
            for l in spread(self.mfmas(self.fX, swapped, extra), [[r] for r in self.reads(self.fY, 1)]): a(l)
            a(wait); a("s_barrier")
            fill = [self.read_advance()] + [[r] for r in self.reads(self.fX, 0)] + self.dma_groups(preA) + [self.dma_advance(advA)]
            for l in spread(self.mfmas(self.fY, swapped, extra), fill): a(l)
        else:
            a(f"s_mov_b32 s19, {self.T//2}")
            a.label(label)
            for (cur, nxt) in ((self.fX, self.fY), (self.fY, self.fX)):
                a(wait); a("s_barrier")
                fill = [self.read_advance()] + [[r] for r in self.reads(nxt, 0)] + self.dma_groups(preA) + [self.dma_advance(advA)]
                for l in spread(self.mfmas(cur, swapped, extra), fill): a(l)
        a("s_sub_u32 s19, s19, 1"); a("s_cmp_lg_u32 s19, 0"); a(f"s_cbranch_scc1 {label}")
```

```python
from common import *

CH_TILES = 8
CH_BYTES = CH_TILES*KV_TILE
NSLOT = 3

def attn_tile_code(p, S, O, P, K1, K2, V, Q1, Q2, aK1c, aK2c, aVc, aK1n, aK2n, extra_mid=None):
    cur = S[p % 2]; nxt = S[(p+1) % 2]
    L = []
    L.append("s_waitcnt lgkmcnt(0)")
    L.append(f"ds_read_b128 v[{V}:{V+3}], v{aVc} offset:{p*KV_TILE}")
    L.append(f"ds_read_b128 v[{V+4}:{V+7}], v{aVc} offset:{p*KV_TILE + 704}")
    L.append(f"v_mfma_f32_32x32x16_bf16 v[{nxt}:{nxt+15}], v[{K1}:{K1+3}], v[{Q1}:{Q1+3}], 0")
    def ex(i): return f"v_exp_f32 v{cur+i}, v{cur+i}"
    def cv(i): return f"v_cvt_pk_bf16_f32 v{P+i}, v{cur+2*i}, v{cur+2*i+1}"
    L += [ex(0), ex(1), ex(2), ex(3), cv(0), ex(4), cv(1)]
    L.append(f"v_mfma_f32_32x32x8_bf16 v[{nxt}:{nxt+15}], v[{K2}:{K2+1}], v[{Q2}:{Q2+1}], v[{nxt}:{nxt+15}]")
    if p + 2 < CH_TILES:
        L.append(f"ds_read_b128 v[{K1}:{K1+3}], v{aK1c} offset:{(p+2)*KV_TILE}")
        L.append(f"ds_read_b64 v[{K2}:{K2+1}], v{aK2c} offset:{(p+2)*KV_TILE}")
    else:
        L.append(f"ds_read_b128 v[{K1}:{K1+3}], v{aK1n} offset:{(p+2-CH_TILES)*KV_TILE}")
        L.append(f"ds_read_b64 v[{K2}:{K2+1}], v{aK2n} offset:{(p+2-CH_TILES)*KV_TILE}")
    L += [ex(5), ex(6), ex(7), cv(2), ex(8), cv(3), ex(9), ex(10)]
    L.append("s_waitcnt lgkmcnt(3)")
    L.append(f"v_mfma_f32_32x32x16_bf16 v[{O}:{O+15}], v[{V}:{V+3}], v[{P}:{P+3}], v[{O}:{O+15}]")
    L += [ex(11), cv(4), ex(12), cv(5), ex(13), ex(14), ex(15), cv(6)]
    L += ["s_waitcnt lgkmcnt(2)", cv(7), "s_nop 1"]
    L.append(f"v_mfma_f32_32x32x16_bf16 v[{O}:{O+15}], v[{V+4}:{V+7}], v[{P+4}:{P+7}], v[{O}:{O+15}]")
    return L

def gen_attn(a, name="attn_kernel"):
    va = VA(1)
    t0,t1,t2,t3 = va.get(),va.get(),va.get(),va.get()
    vdma = va.get(); vq = va.get()
    aK1c,aK2c,aVc,aK1n,aK2n = [va.get() for _ in range(5)]
    S = [va.get(16,4), va.get(16,4)]
    O = va.get(16,4); P = va.get(8,4); K1 = va.get(4,4); K2 = va.get(2,2); Q2 = va.get(2,2); V = va.get(8,4); Q1 = va.get(4,4)
    CI = va.get(16,4)
    kernel_header(a, name)
    a("s_cmp_ge_u32 s2, 256"); a(f"s_cbranch_scc1 {name}_done")
    a(f"s_load_dwordx2 s[32:33], s[0:1], {KA['ws']}")
    a("s_and_b32 s3, s2, 7"); a("s_lshl_b32 s3, s3, 2"); a("s_lshr_b32 s16, s2, 3"); a("s_and_b32 s16, s16, 3"); a("s_add_u32 s40, s3, s16")
    a("s_lshr_b32 s41, s2, 5")
    a(f"v_lshrrev_b32 v{t0}, 6, v0"); a("s_nop 0"); a(f"v_readfirstlane_b32 s26, v{t0}")
    a("v_and_b32 v0, 63, v0")
    a("s_waitcnt lgkmcnt(0)")
    srd(a, 4, 32, WS_KV, WS_KV_SIZE)
    srd(a, 8, 32, WS_Q, ACT_BYTES)
    srd(a, 12, 32, WS_O, ACT_BYTES)
    a("s_mul_i32 s27, s26, 3072")
    a(f"v_lshlrev_b32 v{vdma}, 4, v0"); a(f"v_add_u32 v{vdma}, s27, v{vdma}")
    a(f"s_mul_i32 s21, s40, {KV_HEAD}")
    a("s_mov_b32 s42, s21")
    a("s_mov_b32 s24, s27")
    def dma():
        L = ["s_mov_b32 m0, s24", "s_nop 0"]
        for m in range(3): L.append(f"buffer_load_dwordx4 v{vdma}, s[4:7], s21 offen offset:{m*1024} lds")
        return L
    a("s_cmp_eq_u32 s26, 7"); a(f"s_cbranch_scc1 {name}_nodma0")
    for l in dma(): a(l)
    a(f"s_add_u32 s21, s21, {CH_BYTES}"); a(f"s_add_u32 s24, s24, {CH_BYTES}")
    for l in dma(): a(l)
    a.label(f"{name}_nodma0")
    a(f"s_add_u32 s21, s42, {2*CH_BYTES}"); a(f"s_add_u32 s24, s27, {2*CH_BYTES}")
    a(f"v_and_b32 v{t0}, 31, v0"); a(f"v_lshrrev_b32 v{t1}, 5, v0")
    a("s_lshl_b32 s16, s41, 8"); a("s_lshl_b32 s17, s26, 5"); a("s_add_u32 s16, s16, s17")
    a(f"v_add_u32 v{t2}, s16, v{t0}")
    a(f"v_mul_u32_u24 v{vq}, 0x500, v{t2}")
    a("s_mul_i32 s16, s40, 40"); a(f"v_add_u32 v{vq}, s16, v{vq}")
    a(f"v_lshl_add_u32 v{t2}, v{t1}, 4, v{vq}")
    a(f"buffer_load_dwordx4 v[{Q1}:{Q1+3}], v{t2}, s[8:11], 0 offen")
    a(f"buffer_load_dwordx2 v[{Q2}:{Q2+1}], v{vq}, s[8:11], 0 offen offset:32")
    a(f"v_lshlrev_b32 v{aK1c}, 4, v0")
    a(f"v_lshlrev_b32 v{aK2c}, 3, v{t0}"); a(f"v_add_u32 v{aK2c}, 1024, v{aK2c}")
    a(f"v_mul_u32_u24 v{aVc}, 352, v{t1}"); a(f"v_lshl_add_u32 v{aVc}, v{t0}, 4, v{aVc}"); a(f"v_add_u32 v{aVc}, 1280, v{aVc}")
    a(f"v_add_u32 v{aK1n}, {CH_BYTES}, v{aK1c}"); a(f"v_add_u32 v{aK2n}, {CH_BYTES}, v{aK2c}")
    for i in range(16): a(f"v_mov_b32 v{O+i}, 0")
    a(f"v_cmp_eq_u32 vcc, 0, v{t1}")
    a("s_waitcnt vmcnt(0)")
    a("s_nop 0")
    a(f"v_cndmask_b32 v{Q2}, 0, v{Q2}, vcc"); a(f"v_cndmask_b32 v{Q2+1}, 0, v{Q2+1}, vcc")
    a("s_barrier")
    a(f"ds_read_b128 v[{K1}:{K1+3}], v{aK1c}"); a(f"ds_read_b64 v[{K2}:{K2+1}], v{aK2c}")
    a("s_waitcnt lgkmcnt(0)")
    a(f"v_mfma_f32_32x32x16_bf16 v[{S[0]}:{S[0]+15}], v[{K1}:{K1+3}], v[{Q1}:{Q1+3}], 0")
    a(f"v_mfma_f32_32x32x8_bf16 v[{S[0]}:{S[0]+15}], v[{K2}:{K2+1}], v[{Q2}:{Q2+1}], v[{S[0]}:{S[0]+15}]")
    a(f"ds_read_b128 v[{K1}:{K1+3}], v{aK1c} offset:{KV_TILE}"); a(f"ds_read_b64 v[{K2}:{K2+1}], v{aK2c} offset:{KV_TILE}")
    a("s_mov_b32 s19, 0")
    a("s_mov_b32 s28, 1")
    a.nop(10)
    a.label(f"{name}_loop")
    for p in range(CH_TILES):
        L = attn_tile_code(p, S, O, P, K1, K2, V, Q1, Q2, aK1c, aK2c, aVc, aK1n, aK2n)
        if p == 6:
            a("s_waitcnt vmcnt(0)"); a("s_barrier")
            a("s_cmp_ge_u32 s19, 6"); a(f"s_cbranch_scc1 {name}_nodma1")
            a("s_cmp_eq_u32 s26, 7"); a(f"s_cbranch_scc1 {name}_nodma1")
            for l in dma(): a(l)
            a.label(f"{name}_nodma1")
            a(f"s_add_u32 s21, s21, {CH_BYTES}"); a(f"s_add_u32 s24, s24, {CH_BYTES}")
            a(f"s_add_u32 s29, s27, {NSLOT*CH_BYTES}"); a("s_cmp_eq_u32 s24, s29"); a("s_cselect_b32 s24, s27, s24")
        for l in L: a(l)
    a(f"v_mov_b32 v{aK1c}, v{aK1n}"); a(f"v_mov_b32 v{aK2c}, v{aK2n}")
    a("s_cmp_eq_u32 s28, 0"); a(f"s_mov_b32 s30, {CH_BYTES}"); a(f"s_cselect_b32 s30, {(-2*CH_BYTES) & 0xffffffff:#x}, s30")
    a(f"v_add_u32 v{aVc}, s30, v{aVc}")
    a("s_add_u32 s28, s28, 1"); a(f"s_cmp_eq_u32 s28, {NSLOT}"); a("s_cselect_b32 s28, 0, s28")
    a("s_cmp_eq_u32 s28, 0"); a(f"s_mov_b32 s30, {CH_BYTES}"); a(f"s_cselect_b32 s30, {(-2*CH_BYTES) & 0xffffffff:#x}, s30")
    a(f"v_add_u32 v{aK1n}, s30, v{aK1n}"); a(f"v_add_u32 v{aK2n}, s30, v{aK2n}")
    a("s_add_u32 s19, s19, 1"); a("s_cmp_lt_u32 s19, 8"); a(f"s_cbranch_scc1 {name}_loop")
    a("s_mov_b32 s43, 0")
    a.label(f"{name}_fin")
    a.nop(12)
    a(f"v_mov_b32 v{t0}, v{O+8}"); a(f"v_mov_b32 v{t1}, v{O+8}"); a("s_nop 1")
    a(f"v_permlane32_swap_b32 v{t0}, v{t1}")
    a("s_nop 1")
    a("s_cmp_lg_u32 s43, 0"); a(f"s_cbranch_scc1 {name}_store")
    a(f"v_mov_b32 v{t2}, 0")
    for i in range(8, 12): a(f"v_fma_f32 v{t2}, v{O+i}, 0, v{t2}")
    a(f"v_cmp_gt_u32 vcc, 32, v0"); a("s_nop 1")
    a(f"v_cndmask_b32 v{t2}, 0, v{t2}, vcc")
    for i in range(8): a(f"v_fma_f32 v{t2}, v{O+i}, 0, v{t2}")
    a(f"s_mov_b32 s16, 0x1f800000"); a(f"s_mov_b32 s17, 0x5f800000")
    a(f"v_cmp_le_f32 vcc, s16, v{t1}"); a(f"v_cmp_ge_f32 s[44:45], s17, v{t1}"); a(f"v_cmp_o_f32 s[46:47], v{t2}, v{t2}")
    a("s_nop 3")
    a("s_and_b64 s[44:45], s[44:45], vcc"); a("s_and_b64 s[44:45], s[44:45], s[46:47]")
    a("s_cmp_eq_u64 s[44:45], exec"); a(f"s_cbranch_scc0 {name}_slow")
    a.label(f"{name}_store")
    a(f"v_rcp_f32 v{t1}, v{t1}"); a("s_nop 0")
    for i in range(12): a(f"v_mul_f32 v{O+i}, v{O+i}, v{t1}")
    for i in range(6): a(f"v_cvt_pk_bf16_f32 v{O+i}, v{O+2*i}, v{O+2*i+1}")
    a(f"v_lshrrev_b32 v{t0}, 5, v0"); a(f"v_lshl_add_u32 v{t0}, v{t0}, 3, v{vq}")
    a(f"buffer_store_dwordx2 v[{O}:{O+1}], v{t0}, s[12:15], 0 offen")
    a(f"buffer_store_dwordx2 v[{O+2}:{O+3}], v{t0}, s[12:15], 0 offen offset:16")
    a("s_mov_b32 exec_hi, 0")
    a(f"buffer_store_dwordx2 v[{O+4}:{O+5}], v{t0}, s[12:15], 0 offen offset:32")
    a("s_endpgm")
    a.label(f"{name}_slow")
    a(f"v_and_b32 v{t0}, 31, v0"); a(f"v_lshrrev_b32 v{t1}, 5, v0")
    a(f"v_lshlrev_b32 v{aK1c}, 4, v0")
    a(f"v_lshlrev_b32 v{aK2c}, 3, v{t0}"); a(f"v_add_u32 v{aK2c}, 1024, v{aK2c}")
    a(f"v_mul_u32_u24 v{aVc}, 352, v{t1}"); a(f"v_lshl_add_u32 v{aVc}, v{t0}, 4, v{aVc}"); a(f"v_add_u32 v{aVc}, 1280, v{aVc}")
    a(f"v_mov_b32 v{t3}, 0xff800000")
    a("s_mov_b32 s21, s42"); a("s_mov_b32 s19, 64")
    a.label(f"{name}_slow1")
    a(f"buffer_load_dwordx4 v[{K1}:{K1+3}], v{aK1c}, s[4:7], s21 offen"); a(f"buffer_load_dwordx2 v[{K2}:{K2+1}], v{aK2c}, s[4:7], s21 offen")
    a("s_waitcnt vmcnt(0)")
    a(f"v_mfma_f32_32x32x16_bf16 v[{S[0]}:{S[0]+15}], v[{K1}:{K1+3}], v[{Q1}:{Q1+3}], 0")
    a(f"v_mfma_f32_32x32x8_bf16 v[{S[0]}:{S[0]+15}], v[{K2}:{K2+1}], v[{Q2}:{Q2+1}], v[{S[0]}:{S[0]+15}]")
    a.nop(14)
    for i in range(0, 16, 2): a(f"v_max3_f32 v{t3}, v{S[0]+i}, v{S[0]+i+1}, v{t3}")
    a(f"s_add_u32 s21, s21, {KV_TILE}"); a("s_sub_u32 s19, s19, 1"); a("s_cmp_lg_u32 s19, 0"); a(f"s_cbranch_scc1 {name}_slow1")
    a(f"v_mov_b32 v{t2}, v{t3}"); a("s_nop 1"); a(f"v_permlane32_swap_b32 v{t2}, v{t3}"); a("s_nop 1")
    a(f"v_max_f32 v{t3}, v{t2}, v{t3}")
    for i in range(16): a(f"v_sub_f32 v{CI+i}, 0, v{t3}")
    for i in range(16): a(f"v_mov_b32 v{O+i}, 0")
    a("s_mov_b32 s21, s42"); a("s_mov_b32 s19, 64")
    a.label(f"{name}_slow2")
    a(f"buffer_load_dwordx4 v[{K1}:{K1+3}], v{aK1c}, s[4:7], s21 offen"); a(f"buffer_load_dwordx2 v[{K2}:{K2+1}], v{aK2c}, s[4:7], s21 offen")
    a(f"buffer_load_dwordx4 v[{V}:{V+3}], v{aVc}, s[4:7], s21 offen"); a(f"buffer_load_dwordx4 v[{V+4}:{V+7}], v{aVc}, s[4:7], s21 offen offset:704")
    a("s_waitcnt vmcnt(0)")
    a(f"v_mfma_f32_32x32x16_bf16 v[{S[0]}:{S[0]+15}], v[{K1}:{K1+3}], v[{Q1}:{Q1+3}], v[{CI}:{CI+15}]")
    a.nop(12)
    a(f"v_mfma_f32_32x32x8_bf16 v[{S[0]}:{S[0]+15}], v[{K2}:{K2+1}], v[{Q2}:{Q2+1}], v[{S[0]}:{S[0]+15}]")
    a.nop(14)
    for i in range(16): a(f"v_exp_f32 v{S[0]+i}, v{S[0]+i}")
    a("s_nop 0")
    for i in range(8): a(f"v_cvt_pk_bf16_f32 v{P+i}, v{S[0]+2*i}, v{S[0]+2*i+1}")
    a("s_nop 1")
    a(f"v_mfma_f32_32x32x16_bf16 v[{O}:{O+15}], v[{V}:{V+3}], v[{P}:{P+3}], v[{O}:{O+15}]")
    a(f"v_mfma_f32_32x32x16_bf16 v[{O}:{O+15}], v[{V+4}:{V+7}], v[{P+4}:{P+7}], v[{O}:{O+15}]")
    a(f"s_add_u32 s21, s21, {KV_TILE}"); a("s_sub_u32 s19, s19, 1"); a("s_cmp_lg_u32 s19, 0"); a(f"s_cbranch_scc1 {name}_slow2")
    a("s_mov_b32 s43, 1")
    a(f"s_branch {name}_fin")
    a.label(f"{name}_done")
    a("s_endpgm")
    return kernel_desc(name, va.n, 64), NSLOT*CH_BYTES
```

```python
from gemm import *

def store_rowmajor(a, g, srd_, vaddr, ld2, packed):
    pass

def gen_g1(a, name="g1_kernel"):
    va = VA(1)
    t0,t1,t2,t3 = va.get(),va.get(),va.get(),va.get()
    g = Gemm(name, 128, 160, '2x2', NS=4, T=10, browb=320, va=va)
    tmp = va.get(24, 4)
    vad = va.get(12)
    kernel_header(a, name)
    a("s_cmp_ge_u32 s2, 256"); a(f"s_cbranch_scc1 {name}_done")
    a(f"s_load_dwordx2 s[32:33], s[0:1], {KA['ws']}")
    a(f"s_load_dwordx2 s[34:35], s[0:1], {KA['wqkv']}")
    a(f"s_load_dwordx2 s[36:37], s[0:1], {KA['w1']}")
    a("s_and_b32 s3, s2, 7"); a("s_lshr_b32 s16, s2, 3")
    a("s_and_b32 s17, s3, 1"); a("s_lshl_b32 s17, s17, 3"); a("s_and_b32 s18, s16, 7"); a("s_add_u32 s40, s17, s18")
    a("s_lshr_b32 s17, s3, 1"); a("s_lshl_b32 s17, s17, 2"); a("s_lshr_b32 s18, s16, 3"); a("s_add_u32 s41, s17, s18")
    a("s_lshl_b32 s42, s40, 7")
    g.setup_lane(a, t0,t1,t2,t3)
    a("s_waitcnt lgkmcnt(0)")
    a("s_cmp_lt_u32 s41, 12")
    a(f"s_cselect_b32 s16, {hex(WS_XN)}, {hex(WS_XN2)}")
    a("s_add_u32 s4, s32, s16"); a("s_addc_u32 s5, s33, 0")
    a(f"s_mov_b32 s6, {hex(ACT_BYTES)}"); a("s_mov_b32 s7, 0x00020000")
    a("s_cmp_lt_u32 s41, 12")
    a("s_cselect_b32 s8, s34, s36"); a("s_cselect_b32 s9, s35, s37")
    a(f"s_mov_b32 s10, {hex(640*640*2)}"); a(f"s_cselect_b32 s10, {hex(640*1920*2)}, s10")
    a("s_mov_b32 s43, 1280"); a("s_cselect_b32 s43, 3840, s43")
    a("s_cselect_b32 s16, 0, 12")
    a("s_mov_b32 s11, 0x00020000")
    a("s_sub_u32 s16, s41, s16"); a("s_mul_i32 s44, s16, 320")
    a("s_lshl_b32 s23, s43, 6")
    a("s_mov_b32 s21, 0"); a("s_mov_b32 s22, 0")
    g.setup_dma_A(a, "s42", 1280, t0,t1,t2)
    g.setup_dma_B(a, "s43", "s44", 20, t0,t1,t2,t3)
    g.setup_reads(a, t0,t1,t2)
    advA = ["s_add_u32 s21, s21, 128"]
    g.prologue(a, advA)
    a("s_sub_u32 s16, s41, 8"); a("s_cmp_lt_u32 s16, 4"); a(f"s_cbranch_scc1 {name}_vloop")
    g.loop(a, True, advA, f"{name}_loop")
    a.nop(8)
    a(f"v_and_b32 v{t0}, 15, v0"); a(f"v_lshrrev_b32 v{t1}, 4, v0")
    a("s_cmp_lt_u32 s41, 4");  a(f"s_cbranch_scc1 {name}_epq")
    a("s_cmp_lt_u32 s41, 8");  a(f"s_cbranch_scc1 {name}_epk")
    srd(a, 12, 32, WS_H, ACT_BYTES)
    a("s_sub_u32 s16, s41, 12")
    def rowmajor_addr():
        a("s_lshl_b32 s17, s28, 6"); a("s_add_u32 s17, s17, s42")
        a(f"v_add_u32 v{t2}, s17, v{t0}")
        a(f"v_mul_u32_u24 v{vad}, 0x500, v{t2}")
        a("s_mul_i32 s16, s16, 320"); a("s_mul_i32 s17, s29, 160"); a("s_add_u32 s16, s16, s17")
        a(f"v_lshl_add_u32 v{vad}, v{t1}, 3, v{vad}")
        a(f"v_add_u32 v{vad}, s16, v{vad}")
    rowmajor_addr()
    CC0 = tmp+16
    a(f"v_mov_b32 v{CC0}, {hexf(GELU_C0)}"); a(f"v_mov_b32 v{CC0+1}, {hexf(GELU_C0)}")
    a(f"s_mov_b32 s46, {hexf(GELU_C1)}"); a(f"s_mov_b32 s47, {hexf(GELU_C1)}")
    def store_rm(mb, nb):
        c = g.accreg(mb, nb)
        a(f"v_cvt_pk_bf16_f32 v{c}, v{c}, v{c+1}")
        a(f"v_cvt_pk_bf16_f32 v{c+1}, v{c+2}, v{c+3}")
        a(f"buffer_store_dwordx2 v[{c}:{c+1}], v{vad}, s[12:15], s{48+mb} offen offset:{nb*32}")
    for mb in range(4): a(f"s_mov_b32 s{48+mb}, {mb*16*1280}")
    for mb in range(4):
        for nb0 in range(0, 5, 2):
            nbs = [nb for nb in (nb0, nb0+1) if nb < 5]
            pairs = []
            for nb in nbs:
                c = g.accreg(mb, nb); pairs += [c, c+2]
            gelu_pairs(a, pairs, tmp, CC0, 46)
            for nb in nbs: store_rm(mb, nb)
    a(f"s_branch {name}_done")
    a.label(f"{name}_epq")
    srd(a, 12, 32, WS_Q, ACT_BYTES)
    a("s_mov_b32 s16, s41")
    rowmajor_addr()
    a(f"s_mov_b32 s46, {hexf(QSCALE)}")
    for mb in range(4): a(f"s_mov_b32 s{48+mb}, {mb*16*1280}")
    for mb in range(4):
        for nb in range(5):
            c = g.accreg(mb, nb)
            a(f"v_pk_mul_f32 v[{c}:{c+1}], v[{c}:{c+1}], s[46:47] op_sel_hi:[1,0]")
            a(f"v_pk_mul_f32 v[{c+2}:{c+3}], v[{c+2}:{c+3}], s[46:47] op_sel_hi:[1,0]")
            store_rm(mb, nb)
    a(f"s_branch {name}_done")
    a.label(f"{name}_epk")
    srd(a, 12, 32, WS_KV, WS_KV_SIZE)
    a("s_sub_u32 s16, s41, 4"); a(f"s_mul_i32 s16, s16, {8*KV_HEAD}")
    a("s_lshl_b32 s17, s40, 2"); a("s_lshl_b32 s18, s28, 1"); a("s_add_u32 s17, s17, s18"); a(f"s_mul_i32 s17, s17, {KV_TILE}")
    a("s_add_u32 s16, s16, s17")
    a("s_mul_i32 s17, s29, 20")
    a(f"s_mov_b32 s18, {KV_HEAD}")
    for nb in range(5):
        a(f"v_add_u32 v{t2}, s17, v{t1}")
        a(f"v_add_u32 v{t2}, {4*nb}, v{t2}")
        a(f"v_mul_u32_u24 v{t3}, 52, v{t2}"); a(f"v_lshrrev_b32 v{t3}, 8, v{t3}")
        a(f"v_mul_u32_u24 v{tmp}, 5, v{t3}"); a(f"v_sub_u32 v{t2}, v{t2}, v{tmp}")
        a(f"v_mul_lo_u32 v{t3}, v{t3}, s18"); a(f"v_add_u32 v{t3}, s16, v{t3}")
        a(f"v_lshrrev_b32 v{tmp}, 1, v{t2}"); a(f"v_lshlrev_b32 v{tmp}, 9, v{tmp}")
        a(f"v_and_b32 v{tmp+1}, 1, v{t2}"); a(f"v_lshl_add_u32 v{tmp}, v{tmp+1}, 3, v{tmp}")
        a(f"v_cmp_eq_u32 vcc, 4, v{t2}")
        a(f"v_lshlrev_b32 v{tmp+1}, 4, v{t0}"); a(f"v_lshlrev_b32 v{tmp+2}, 3, v{t0}")
        a(f"v_cndmask_b32 v{tmp+1}, v{tmp+1}, v{tmp+2}, vcc")
        a(f"v_add3_u32 v{vad+2*nb}, v{t3}, v{tmp}, v{tmp+1}")
        a(f"v_mov_b32 v{tmp+1}, 256"); a(f"v_mov_b32 v{tmp+2}, 128")
        a(f"v_cndmask_b32 v{tmp+1}, v{tmp+1}, v{tmp+2}, vcc")
        a(f"v_add_u32 v{vad+2*nb+1}, v{vad+2*nb}, v{tmp+1}")
    for x in range(40): assert (x*52)>>8 == x//5
    for mb in range(4):
        for nb in range(5):
            c = g.accreg(mb, nb)
            a(f"v_cvt_pk_bf16_f32 v{c}, v{c}, v{c+1}")
            a(f"v_cvt_pk_bf16_f32 v{c+1}, v{c+2}, v{c+3}")
            a(f"buffer_store_dwordx2 v[{c}:{c+1}], v{vad+2*nb+(mb&1)}, s[12:15], 0 offen offset:{(mb>>1)*KV_TILE}")
    a(f"s_branch {name}_done")
    a.label(f"{name}_vloop")
    g.loop(a, False, advA, f"{name}_loopv")
    a.nop(8)
    srd(a, 12, 32, WS_KV, WS_KV_SIZE)
    a(f"v_and_b32 v{t0}, 15, v0"); a(f"v_lshrrev_b32 v{t1}, 4, v0")
    a("s_sub_u32 s16, s41, 8"); a(f"s_mul_i32 s16, s16, {8*KV_HEAD}")
    a("s_lshl_b32 s17, s40, 2"); a("s_lshl_b32 s18, s28, 1"); a("s_add_u32 s17, s17, s18"); a(f"s_mul_i32 s17, s17, {KV_TILE}")
    a("s_add_u32 s16, s16, s17"); a("s_add_u32 s16, s16, 1280")
    a(f"v_and_b32 v{tmp}, 1, v{t1}"); a(f"v_mul_u32_u24 v{tmp}, 352, v{tmp}")
    a(f"v_lshrrev_b32 v{tmp+1}, 1, v{t1}"); a(f"v_lshl_add_u32 v{tmp}, v{tmp+1}, 3, v{tmp}")
    a(f"v_add_u32 v{tmp}, s16, v{tmp}")
    a("s_mul_i32 s17, s29, 80")
    a(f"s_mov_b32 s18, {KV_HEAD}")
    for nb in range(5):
        a(f"v_add_u32 v{t2}, s17, v{t0}")
        a(f"v_add_u32 v{t2}, {16*nb}, v{t2}")
        a(f"v_mul_u32_u24 v{t3}, 205, v{t2}"); a(f"v_lshrrev_b32 v{t3}, 12, v{t3}")
        a(f"v_mul_u32_u24 v{tmp+1}, 20, v{t3}"); a(f"v_sub_u32 v{t2}, v{t2}, v{tmp+1}")
        a(f"v_mul_lo_u32 v{t3}, v{t3}, s18")
        a(f"v_lshl_add_u32 v{t3}, v{t2}, 4, v{t3}")
        a(f"v_add_u32 v{vad+nb}, v{t3}, v{tmp}")
    for x in range(160): assert (x*205)>>12 == x//20
    for mb in range(4):
        for nb in range(5):
            c = g.accreg(mb, nb)
            a(f"v_cvt_pk_bf16_f32 v{c}, v{c}, v{c+1}")
            a(f"v_cvt_pk_bf16_f32 v{c+1}, v{c+2}, v{c+3}")
            a(f"buffer_store_dwordx2 v[{c}:{c+1}], v{vad+nb}, s[12:15], 0 offen offset:{(mb>>1)*KV_TILE + (mb&1)*704}")
    a("s_cmp_ge_u32 s26, 2"); a(f"s_cbranch_scc1 {name}_done")
    a("s_lshl_b32 s17, s26, 6"); a(f"v_add_u32 v{t0}, s17, v0")
    a(f"v_lshrrev_b32 v{t1}, 4, v{t0}"); a(f"v_mul_lo_u32 v{t1}, v{t1}, s18")
    a(f"v_lshrrev_b32 v{t2}, 2, v{t0}"); a(f"v_and_b32 v{t2}, 3, v{t2}"); a(f"v_mul_u32_u24 v{t2}, {KV_TILE}, v{t2}")
    a(f"v_add_u32 v{t1}, v{t1}, v{t2}")
    a(f"v_and_b32 v{t2}, 3, v{t0}"); a(f"v_mul_u32_u24 v{t2}, 352, v{t2}")
    a(f"v_add_u32 v{t1}, v{t1}, v{t2}")
    a("s_sub_u32 s16, s41, 8"); a(f"s_mul_i32 s16, s16, {8*KV_HEAD}")
    a("s_lshl_b32 s17, s40, 2"); a(f"s_mul_i32 s17, s17, {KV_TILE}")
    a("s_add_u32 s16, s16, s17"); a(f"s_add_u32 s16, s16, {1280 + 20*16}")
    a(f"v_add_u32 v{t1}, s16, v{t1}")
    for i in range(4): a(f"v_mov_b32 v{tmp+4+i}, 0x3f803f80")
    assert (tmp+4) % 2 == 0
    a(f"buffer_store_dwordx4 v[{tmp+4}:{tmp+7}], v{t1}, s[12:15], 0 offen")
    a.label(f"{name}_done")
    a("s_endpgm")
    return kernel_desc(name, va.n, 64), g.lds
```

```python
from gemm import *

def tilemap_8x4(a, nm_group, nn_group, mbits):
    a("s_and_b32 s3, s2, 7"); a("s_lshr_b32 s16, s2, 3")
    a("s_lshr_b32 s17, s3, 1"); a("s_lshl_b32 s17, s17, 3"); a("s_and_b32 s18, s16, 7"); a("s_add_u32 s40, s17, s18")
    a("s_and_b32 s17, s3, 1"); a("s_lshl_b32 s17, s17, 2"); a("s_lshr_b32 s18, s16, 3"); a("s_add_u32 s41, s17, s18")

class PreA:
    def __init__(self, fn, regs): self.fn = fn; self.regs = regs
    def __call__(self, m): return self.fn(m)
    def addr(self, m): return (self.regs[m], "0")

def ks_exchange(a, g, t0, t1, xbuf):
    a("s_waitcnt vmcnt(0)"); a("s_barrier")
    a.nop(4)
    a(f"v_lshlrev_b32 v{t0}, 4, v0")
    a("s_mul_i32 s16, s26, 5120"); a(f"v_add_u32 v{t1}, s16, v{t0}")
    a("s_xor_b32 s16, s26, 1"); a("s_mul_i32 s16, s16, 5120"); a(f"v_add_u32 v{t0}, s16, v{t0}")
    lab = g.name
    a("s_cmp_eq_u32 s29, 0"); a(f"s_cbranch_scc1 {lab}_x0")
    for nb in range(5):
        c = g.accreg(0, nb); a(f"ds_write_b128 v{t1}, v[{c}:{c+3}] offset:{nb*1024}")
    for nb in range(5):
        c0 = g.accreg(0, nb); c1 = g.accreg(1, nb)
        for r in range(4): a(f"v_mov_b32 v{c0+r}, v{c1+r}")
    a(f"s_branch {lab}_x1")
    a.label(f"{lab}_x0")
    for nb in range(5):
        c = g.accreg(1, nb); a(f"ds_write_b128 v{t1}, v[{c}:{c+3}] offset:{nb*1024}")
    a.label(f"{lab}_x1")
    a("s_waitcnt lgkmcnt(0)"); a("s_barrier")
    for nb in range(5):
        a(f"ds_read_b128 v[{xbuf+4*nb}:{xbuf+4*nb+3}], v{t0} offset:{nb*1024}")
    a("s_waitcnt lgkmcnt(0)")
    for nb in range(5):
        c = g.accreg(0, nb)
        a(f"v_pk_add_f32 v[{c}:{c+1}], v[{c}:{c+1}], v[{xbuf+4*nb}:{xbuf+4*nb+1}]")
        a(f"v_pk_add_f32 v[{c+2}:{c+3}], v[{c+2}:{c+3}], v[{xbuf+4*nb+2}:{xbuf+4*nb+3}]")

def add_bf16_pair(a, c, src, t):
    a(f"v_lshlrev_b32 v{t}, 16, v{src}"); a(f"v_and_b32 v{t+1}, 0xffff0000, v{src}")
    a(f"v_lshlrev_b32 v{t+2}, 16, v{src+1}"); a(f"v_and_b32 v{t+3}, 0xffff0000, v{src+1}")
    a(f"v_pk_add_f32 v[{c}:{c+1}], v[{c}:{c+1}], v[{t}:{t+1}]")
    a(f"v_pk_add_f32 v[{c+2}:{c+3}], v[{c+2}:{c+3}], v[{t+2}:{t+3}]")

def out_addr_64x80(a, vad, t0, t1):
    a(f"v_and_b32 v{t0}, 15, v0"); a(f"v_lshrrev_b32 v{t1}, 4, v0")
    a("s_lshl_b32 s16, s28, 5"); a("s_lshl_b32 s17, s29, 4"); a("s_add_u32 s16, s16, s17"); a("s_add_u32 s16, s16, s42")
    a(f"v_add_u32 v{t0}, s16, v{t0}")
    a(f"v_mul_u32_u24 v{vad}, 0x500, v{t0}")
    a("s_mul_i32 s16, s41, 160")
    a(f"v_lshl_add_u32 v{vad}, v{t1}, 3, v{vad}")
    a(f"v_add_u32 v{vad}, s16, v{vad}")

def gen_g2(a, name="g2_kernel"):
    va = VA(1)
    t0,t1,t2,t3 = va.get(),va.get(),va.get(),va.get()
    g = Gemm(name, 64, 80, 'ks', NS=6, T=10, browb=192, va=va)
    vhi = va.get(); vtmp = [va.get(), va.get()]; vad = va.get(); vrow = va.get()
    res = va.get(10, 2); xbuf = va.get(20, 4); tq = va.get(4, 2)
    kernel_header(a, name)
    a("s_cmp_ge_u32 s2, 256"); a(f"s_cbranch_scc1 {name}_done")
    a(f"s_load_dwordx2 s[32:33], s[0:1], {KA['ws']}")
    a(f"s_load_dwordx2 s[34:35], s[0:1], {KA['w2']}")
    tilemap_8x4(a, 8, 4, 0)
    a("s_lshl_b32 s42, s40, 6")
    g.setup_lane(a, t0,t1,t2,t3)
    a("s_waitcnt lgkmcnt(0)")
    srd(a, 4, 32, WS_H, ACT_BYTES)
    srd(a, 8, 34, 0, 640*640*2)
    srd(a, 12, 32, WS_XN, ACT_BYTES)
    a("s_mov_b32 s43, 1280"); a("s_mul_i32 s44, s41, 160"); a(f"s_mov_b32 s23, {64*1280}"); a("s_mov_b32 s22, 0")
    g.setup_dma_A(a, "s42", 1280, t0,t1,t2)
    a(f"v_lshrrev_b32 v{vhi}, 2, v{t1}")
    g.setup_dma_B(a, "s43", "s44", 10, t0,t1,t2,t3)
    g.setup_reads(a, t0,t1,t2)
    out_addr_64x80(a, vad, t0, t1)
    a(f"v_mov_b32 v{vrow}, v{t0}")
    for nb in range(5): a(f"buffer_load_dwordx2 v[{res+2*nb}:{res+2*nb+1}], v{vad}, s[12:15], 0 offen offset:{nb*32}")
    def shiftcalc():
        L = []
        for (dst, add) in (("s46", 0), ("s47", 4)):
            L += ["s_lshl_b32 s48, s45, 3", f"s_add_u32 s48, s48, {add}", "s_mul_i32 s48, s48, 205", "s_lshr_b32 s48, s48, 12",
                  "s_lshr_b32 s49, s48, 1", "s_add_u32 s49, s49, 1", "s_mul_i32 s49, s49, 1280", "s_sub_u32 s50, 0, s49",
                  "s_bitcmp1_b32 s48, 0", f"s_cselect_b32 {dst}, s49, s50"]
        L += ["s_sub_u32 s47, s47, s46", "s_lshl_b32 s48, s45, 7", "s_add_u32 s46, s46, s48"]
        return L
    a("s_mov_b32 s45, 0")
    for l in shiftcalc(): a(l)
    pre = PreA(lambda m: [f"v_mad_i32_i24 v{vtmp[m]}, v{vhi}, s47, v{g.vAoff[m]}", f"v_add_u32 v{vtmp[m]}, s46, v{vtmp[m]}"], vtmp)
    advA = ["s_add_u32 s45, s45, 1"] + shiftcalc()
    g.prologue(a, advA, pre)
    g.loop(a, True, advA, f"{name}_loop", pre)
    a.nop(8)
    ks_exchange(a, g, t0, t1, xbuf)
    srd(a, 12, 32, WS_X1, ACT_BYTES)
    srd(a, 16, 32, WS_ST, S*64)
    a(f"v_mov_b32 v{t2}, 0"); a(f"v_mov_b32 v{t3}, 0")
    for nb in range(5):
        c = g.accreg(0, nb)
        add_bf16_pair(a, c, res+2*nb, tq)
        for r in range(4):
            a(f"v_add_f32 v{t2}, v{t2}, v{c+r}"); a(f"v_fmac_f32 v{t3}, v{c+r}, v{c+r}")
        a(f"v_cvt_pk_bf16_f32 v{c}, v{c}, v{c+1}"); a(f"v_cvt_pk_bf16_f32 v{c+1}, v{c+2}, v{c+3}")
        a(f"buffer_store_dwordx2 v[{c}:{c+1}], v{vad}, s[12:15], 0 offen offset:{nb*32}")
    for r in (t2, t3):
        for sw in ("v_permlane16_swap_b32", "v_permlane32_swap_b32"):
            a(f"v_mov_b32 v{t0}, v{r}"); a("s_nop 1"); a(f"{sw} v{t0}, v{r}"); a("s_nop 1"); a(f"v_add_f32 v{r}, v{t0}, v{r}")
    assert t2 % 2 == 1 and t3 == t2+1
    a(f"v_mov_b32 v{tq}, v{t2}"); a(f"v_mov_b32 v{tq+1}, v{t3}")
    a(f"v_lshlrev_b32 v{t0}, 6, v{vrow}"); a("s_lshl_b32 s30, s41, 3"); a(f"v_add_u32 v{t0}, s30, v{t0}")
    a("s_mov_b32 exec_lo, 0xffff"); a("s_mov_b32 exec_hi, 0")
    a(f"buffer_store_dwordx2 v[{tq}:{tq+1}], v{t0}, s[16:19], 0 offen")
    a.label(f"{name}_done")
    a("s_endpgm")
    return kernel_desc(name, va.n, 64), g.lds

def gen_g3(a, name="g3_kernel"):
    va = VA(1)
    t0,t1,t2,t3 = va.get(),va.get(),va.get(),va.get()
    g = Gemm(name, 128, 96, '2x2', NS=5, T=10, browb=192, va=va)
    ones = va.get(4, 4); cs = va.get(12, 4); tmp = va.get(24, 4); st = va.get(16, 4); vad = va.get()
    STOFF = g.lds
    kernel_header(a, name)
    a("s_cmp_ge_u32 s2, 256"); a(f"s_cbranch_scc1 {name}_done")
    a(f"s_load_dwordx2 s[32:33], s[0:1], {KA['ws']}")
    a(f"s_load_dwordx2 s[34:35], s[0:1], {KA['w3']}")
    a("s_and_b32 s3, s2, 7"); a("s_lshr_b32 s16, s2, 3")
    a("s_and_b32 s17, s3, 1"); a("s_lshl_b32 s17, s17, 3"); a("s_and_b32 s18, s16, 7"); a("s_add_u32 s40, s17, s18")
    a("s_lshr_b32 s17, s3, 1"); a("s_lshl_b32 s17, s17, 2"); a("s_lshr_b32 s18, s16, 3"); a("s_add_u32 s41, s17, s18")
    a("s_lshl_b32 s42, s40, 7")
    a(f"v_mov_b32 v{tmp+20}, v0")
    g.setup_lane(a, t0,t1,t2,t3)
    a("s_waitcnt lgkmcnt(0)")
    srd(a, 4, 32, WS_X1, ACT_BYTES)
    srd(a, 8, 34, 0, 640*1536*2)
    srd(a, 12, 32, WS_ST, S*64)
    a("s_cmp_ge_u32 s26, 2"); a(f"s_cbranch_scc1 {name}_nost")
    a(f"v_add_u32 v{t0}, s42, v{tmp+20}"); a(f"v_lshlrev_b32 v{t0}, 6, v{t0}")
    for i in range(4): a(f"buffer_load_dwordx4 v[{st+4*i}:{st+4*i+3}], v{t0}, s[12:15], 0 offen offset:{16*i}")
    a("s_waitcnt vmcnt(0)")
    for i in range(1, 8): a(f"v_pk_add_f32 v[{st}:{st+1}], v[{st}:{st+1}], v[{st+2*i}:{st+2*i+1}]")
    a(f"s_mov_b32 s16, {hexf(1.0/D)}")
    a(f"v_pk_mul_f32 v[{st}:{st+1}], v[{st}:{st+1}], s[16:17] op_sel_hi:[1,0]")
    a(f"v_fma_f32 v{st+1}, -v{st}, v{st}, v{st+1}")
    a(f"v_max_f32 v{st+1}, 0, v{st+1}")
    a(f"v_add_f32 v{st+1}, {hexf(1e-5)}, v{st+1}")
    a(f"v_rsq_f32 v{st+1}, v{st+1}")
    a(f"v_lshlrev_b32 v{t0}, 3, v{tmp+20}"); a(f"v_add_u32 v{t0}, {STOFF}, v{t0}")
    a(f"ds_write_b64 v{t0}, v[{st}:{st+1}]")
    a.label(f"{name}_nost")
    a("s_mov_b32 s43, 3072"); a("s_mul_i32 s44, s41, 192"); a(f"s_mov_b32 s23, {64*3072}"); a("s_mov_b32 s21, 0"); a("s_mov_b32 s22, 0")
    g.setup_dma_A(a, "s42", 1280, t0,t1,t2)
    g.setup_dma_B(a, "s43", "s44", 12, t0,t1,t2,t3)
    g.setup_reads(a, t0,t1,t2)
    for i in range(4): a(f"v_mov_b32 v{ones+i}, 0x3f803f80")
    for i in range(12): a(f"v_mov_b32 v{cs+i}, 0")
    advA = ["s_add_u32 s21, s21, 128"]
    def extra(f, nb):
        wb = f + 4*g.MB + 4*nb; c = cs + 4*nb
        return [f"v_mfma_f32_16x16x32_bf16 v[{c}:{c+3}], v[{wb}:{wb+3}], v[{ones}:{ones+3}], v[{c}:{c+3}]"]
    g.prologue(a, advA)
    g.loop(a, True, advA, f"{name}_loop", None, extra)
    a.nop(8)
    srd(a, 12, 32, WS_G, S*F*2)
    a(f"v_and_b32 v{t0}, 15, v0"); a(f"v_lshrrev_b32 v{t1}, 4, v0")
    a("s_lshl_b32 s17, s28, 6"); a(f"v_add_u32 v{t2}, s17, v{t0}")
    a(f"v_lshlrev_b32 v{t3}, 3, v{t2}"); a(f"v_add_u32 v{t3}, {STOFF}, v{t3}")
    for mb in range(4): a(f"ds_read_b64 v[{st+2*mb}:{st+2*mb+1}], v{t3} offset:{mb*128}")
    a(f"v_add_u32 v{t2}, s42, v{t2}")
    a(f"s_mov_b32 s16, 3072"); a(f"v_mul_lo_u32 v{vad}, v{t2}, s16")
    a("s_mul_i32 s16, s41, 192"); a("s_mul_i32 s17, s29, 96"); a("s_add_u32 s16, s16, s17")
    a(f"v_lshl_add_u32 v{vad}, v{t1}, 3, v{vad}"); a(f"v_add_u32 v{vad}, s16, v{vad}")
    CC0 = tmp+16
    a(f"v_mov_b32 v{CC0}, {hexf(GELU_C0)}"); a(f"v_mov_b32 v{CC0+1}, {hexf(GELU_C0)}")
    a(f"s_mov_b32 s46, {hexf(GELU_C1)}"); a(f"s_mov_b32 s47, {hexf(GELU_C1)}")
    for mb in range(4): a(f"s_mov_b32 s{48+mb}, {mb*16*3072}")
    a("s_waitcnt lgkmcnt(0)")
    for mb in range(4):
        m = st + 2*mb
        pairs = []
        for nb in range(3):
            c = g.accreg(mb, nb)
            for h in (0, 2):
                a(f"v_pk_fma_f32 v[{c+h}:{c+h+1}], v[{cs+4*nb+h}:{cs+4*nb+h+1}], v[{m}:{m+1}], v[{c+h}:{c+h+1}] op_sel_hi:[1,0,1] neg_lo:[0,1,0] neg_hi:[0,1,0]")
                a(f"v_pk_mul_f32 v[{c+h}:{c+h+1}], v[{c+h}:{c+h+1}], v[{m}:{m+1}] op_sel:[0,1] op_sel_hi:[1,1]")
                pairs.append(c+h)
        gelu_pairs(a, pairs, tmp, CC0, 46)
        for nb in range(3):
            c = g.accreg(mb, nb)
            a(f"v_cvt_pk_bf16_f32 v{c}, v{c}, v{c+1}"); a(f"v_cvt_pk_bf16_f32 v{c+1}, v{c+2}, v{c+3}")
            a(f"buffer_store_dwordx2 v[{c}:{c+1}], v{vad}, s[12:15], s{48+mb} offen offset:{nb*32}")
    a.label(f"{name}_done")
    a("s_endpgm")
    return kernel_desc(name, va.n, 64), g.lds + 1024

def gen_g4(a, name="g4_kernel"):
    va = VA(1)
    t0,t1,t2,t3 = va.get(),va.get(),va.get(),va.get()
    g = Gemm(name, 64, 80, 'ks', NS=6, T=34, browb=192, va=va)
    vrowA = [va.get(), va.get()]; vc16 = va.get(); vtmp = [va.get(), va.get()]; vad = va.get()
    res = va.get(10, 2); res2 = va.get(10, 2); xbuf = va.get(20, 4); tq = va.get(4, 2)
    kernel_header(a, name)
    a("s_cmp_ge_u32 s2, 256"); a(f"s_cbranch_scc1 {name}_done")
    a(f"s_load_dwordx2 s[32:33], s[0:1], {KA['ws']}")
    a(f"s_load_dwordx2 s[34:35], s[0:1], {KA['w4']}")
    a(f"s_load_dwordx2 s[36:37], s[0:1], {KA['wo']}")
    a(f"s_load_dwordx2 s[38:39], s[0:1], {KA['x']}")
    a(f"s_load_dwordx2 s[52:53], s[0:1], {KA['out']}")
    tilemap_8x4(a, 8, 4, 0)
    a("s_lshl_b32 s42, s40, 6")
    g.setup_lane(a, t0,t1,t2,t3)
    a("s_waitcnt lgkmcnt(0)")
    srd(a, 4, 32, WS_G, S*F*2)
    srd(a, 8, 34, 0, 1536*640*2)
    srd(a, 12, 38, 0, ACT_BYTES)
    srd(a, 16, 32, WS_X1, ACT_BYTES)
    a(f"s_add_u32 s54, s32, {hex(WS_O)}"); a("s_addc_u32 s55, s33, 0")
    a("s_mov_b32 s43, 1280"); a("s_mul_i32 s44, s41, 160"); a(f"s_mov_b32 s23, {64*1280}"); a("s_mov_b32 s22, 0"); a("s_mov_b32 s21, 0")
    out_addr_needs = None
    a(f"v_and_b32 v{t0}, 15, v0"); a(f"v_lshrrev_b32 v{t1}, 4, v0")
    a("s_lshl_b32 s46, s28, 5"); a("s_lshl_b32 s47, s29, 4"); a("s_add_u32 s46, s46, s47"); a("s_add_u32 s46, s46, s42")
    a(f"v_add_u32 v{t0}, s46, v{t0}"); a(f"v_mul_u32_u24 v{vad}, 0x500, v{t0}")
    a("s_mul_i32 s46, s41, 160"); a(f"v_lshl_add_u32 v{vad}, v{t1}, 3, v{vad}"); a(f"v_add_u32 v{vad}, s46, v{vad}")
    for nb in range(5): a(f"buffer_load_dwordx2 v[{res+2*nb}:{res+2*nb+1}], v{vad}, s[12:15], 0 offen offset:{nb*32}")
    for nb in range(5): a(f"buffer_load_dwordx2 v[{res2+2*nb}:{res2+2*nb+1}], v{vad}, s[16:19], 0 offen offset:{nb*32}")
    a(f"v_lshrrev_b32 v{t0}, 3, v0"); a("s_lshl_b32 s30, s26, 3"); a(f"v_add_u32 v{t0}, s30, v{t0}")
    a(f"v_lshrrev_b32 v{t1}, 1, v{t0}"); a(f"v_xor_b32 v{t1}, v{t1}, v0"); a(f"v_and_b32 v{t1}, 7, v{t1}")
    a(f"v_lshlrev_b32 v{vc16}, 4, v{t1}")
    a(f"v_add_u32 v{vrowA[0]}, s42, v{t0}"); a(f"v_add_u32 v{vrowA[1]}, 32, v{vrowA[0]}")
    a("s_mov_b32 s45, 3072")
    g.setup_dma_B(a, "s43", "s44", 10, t0,t1,t2,t3)
    g.setup_reads(a, t0,t1,t2)
    pre = PreA(lambda m: [f"v_mad_u32_u24 v{vtmp[m]}, v{vrowA[m]}, s45, v{vc16}"], vtmp)
    pre.addr = lambda m: (vtmp[m], "s21")
    advA = ["s_add_u32 s21, s21, 128",
            "s_cmp_eq_u32 s20, 23",
            "s_cselect_b32 s4, s54, s4", "s_cselect_b32 s5, s55, s5", f"s_cselect_b32 s6, {hex(ACT_BYTES)}, s6",
            "s_cselect_b32 s21, 0, s21", "s_cselect_b32 s45, 1280, s45",
            "s_cselect_b32 s8, s36, s8", "s_cselect_b32 s9, s37, s9", f"s_cselect_b32 s10, {hex(640*640*2)}, s10",
            f"s_cselect_b32 s22, {(-64*1280) & 0xffffffff:#x}, s22"]
    g.prologue(a, advA, pre)
    g.loop(a, True, advA, f"{name}_loop", pre)
    a.nop(8)
    ks_exchange(a, g, t0, t1, xbuf)
    srd(a, 12, 52, 0, ACT_BYTES)
    for nb in range(5):
        c = g.accreg(0, nb)
        add_bf16_pair(a, c, res+2*nb, tq)
        add_bf16_pair(a, c, res2+2*nb, tq)
        a(f"v_cvt_pk_bf16_f32 v{c}, v{c}, v{c+1}"); a(f"v_cvt_pk_bf16_f32 v{c+1}, v{c+2}, v{c+3}")
        a(f"buffer_store_dwordx2 v[{c}:{c+1}], v{vad}, s[12:15], 0 offen offset:{nb*32}")
    a.label(f"{name}_done")
    a("s_endpgm")
    return kernel_desc(name, va.n, 64), g.lds
```

```python
from common import *

def gen_ln(a, name="ln_kernel"):
    kernel_header(a, name)
    a("s_cmp_ge_u32 s2, 256")
    a(f"s_cbranch_scc1 {name}_done")
    a(f"s_load_dwordx2 s[4:5], s[0:1], {KA['x']}")
    a(f"s_load_dwordx2 s[6:7], s[0:1], {KA['ws']}")
    a("v_lshrrev_b32 v1, 4, v0")
    a("s_lshl_b32 s3, s2, 3")
    a("v_add_u32 v1, s3, v1")
    a("v_mul_u32_u24 v1, 0x500, v1")
    a("v_and_b32 v2, 15, v0")
    a("v_lshl_add_u32 v1, v2, 4, v1")
    a("s_waitcnt lgkmcnt(0)")
    srd(a, 8, 4, 0, ACT_BYTES)
    srd(a, 12, 6, WS_XN, 2*ACT_BYTES)
    RAW=8; X=32; T=72
    for m in range(5):
        a(f"buffer_load_dwordx4 v[{RAW+4*m}:{RAW+4*m+3}], v1, s[8:11], 0 offen offset:{256*m}")
    a(f"s_mov_b32 s16, {hexf(1.0/D)}")
    a(f"s_mov_b32 s17, {hexf(1e-5)}")
    a("s_mov_b32 s18, 0")
    a("s_mov_b32 s19, 0xffff0000")
    a("s_waitcnt vmcnt(0)")
    a.label(f"{name}_pass")
    for i in range(20):
        a(f"v_lshlrev_b32 v{X+2*i}, 16, v{RAW+i}")
        a(f"v_and_b32 v{X+2*i+1}, s19, v{RAW+i}")
    a(f"v_pk_add_f32 v[{T}:{T+1}], v[{X}:{X+1}], v[{X+2}:{X+3}]")
    a(f"v_pk_add_f32 v[{T+2}:{T+3}], v[{X+4}:{X+5}], v[{X+6}:{X+7}]")
    for i in range(4, 20, 2):
        a(f"v_pk_add_f32 v[{T}:{T+1}], v[{T}:{T+1}], v[{X+2*i}:{X+2*i+1}]")
        a(f"v_pk_add_f32 v[{T+2}:{T+3}], v[{T+2}:{T+3}], v[{X+2*i+2}:{X+2*i+3}]")
    a(f"v_pk_add_f32 v[{T}:{T+1}], v[{T}:{T+1}], v[{T+2}:{T+3}]")
    a(f"v_add_f32 v{T}, v{T}, v{T+1}")
    def allred(r):
        for sh in (8,4,2,1):
            a("s_nop 1")
            a(f"v_add_f32_dpp v{r}, v{r}, v{r} row_ror:{sh} row_mask:0xf bank_mask:0xf")
    allred(T)
    a(f"v_mul_f32 v{T}, s16, v{T}")
    for i in range(20):
        a(f"v_pk_add_f32 v[{X+2*i}:{X+2*i+1}], v[{X+2*i}:{X+2*i+1}], v[{T}:{T+1}] op_sel_hi:[1,0] neg_lo:[0,1] neg_hi:[0,1]")
    a(f"v_pk_mul_f32 v[{T+2}:{T+3}], v[{X}:{X+1}], v[{X}:{X+1}]")
    a(f"v_pk_mul_f32 v[{T+4}:{T+5}], v[{X+2}:{X+3}], v[{X+2}:{X+3}]")
    for i in range(2, 20, 2):
        a(f"v_pk_fma_f32 v[{T+2}:{T+3}], v[{X+2*i}:{X+2*i+1}], v[{X+2*i}:{X+2*i+1}], v[{T+2}:{T+3}]")
        a(f"v_pk_fma_f32 v[{T+4}:{T+5}], v[{X+2*i+2}:{X+2*i+3}], v[{X+2*i+2}:{X+2*i+3}], v[{T+4}:{T+5}]")
    a(f"v_pk_add_f32 v[{T+2}:{T+3}], v[{T+2}:{T+3}], v[{T+4}:{T+5}]")
    a(f"v_add_f32 v{T+2}, v{T+2}, v{T+3}")
    allred(T+2)
    a(f"v_mov_b32 v{T+3}, s17")
    a(f"v_fma_f32 v{T+2}, v{T+2}, s16, v{T+3}")
    a(f"v_rsq_f32 v{T+2}, v{T+2}")
    a("s_nop 0")
    for i in range(20):
        a(f"v_pk_mul_f32 v[{X+2*i}:{X+2*i+1}], v[{X+2*i}:{X+2*i+1}], v[{T+2}:{T+3}] op_sel_hi:[1,0]")
    for i in range(20):
        a(f"v_cvt_pk_bf16_f32 v{RAW+i}, v{X+2*i}, v{X+2*i+1}")
    for m in range(5):
        a(f"buffer_store_dwordx4 v[{RAW+4*m}:{RAW+4*m+3}], v1, s[12:15], s18 offen offset:{256*m}")
    a(f"s_cmp_eq_u32 s18, 0")
    a(f"s_mov_b32 s18, {hex(ACT_BYTES)}")
    a(f"s_cbranch_scc1 {name}_pass")
    a.label(f"{name}_done")
    a("s_endpgm")
    return kernel_desc(name, 80, 32)
```

```python
import sys
from common import *
from k_ln import gen_ln
from k_g1 import gen_g1

HEADER = open("parallel_sum__mha_block__mixer_s_mlp__prompt.s.ref").read().split("; Override launch")[0]

def build(kernels):
    a = Asm()
    descs = []; launches = []
    for k in kernels:
        if k == "ln":
            descs.append(gen_ln(a)); launches.append("; @launch kernel=ln_kernel grid=(256,1,1) block=(128,1,1) lds=0")
        elif k == "g1":
            d, lds = gen_g1(a); descs.append(d); launches.append(f"; @launch kernel=g1_kernel grid=(256,1,1) block=(256,1,1) lds={lds}")
        elif k == "attn":
            from k_attn import gen_attn
            d, lds = gen_attn(a); descs.append(d); launches.append(f"; @launch kernel=attn_kernel grid=(256,1,1) block=(512,1,1) lds={lds}")
        elif k == "g2":
            from k_g234 import gen_g2
            d, lds = gen_g2(a); descs.append(d); launches.append(f"; @launch kernel=g2_kernel grid=(256,1,1) block=(256,1,1) lds={lds}")
        elif k == "g3":
            from k_g234 import gen_g3
            d, lds = gen_g3(a); descs.append(d); launches.append(f"; @launch kernel=g3_kernel grid=(256,1,1) block=(256,1,1) lds={lds}")
        elif k == "g4":
            from k_g234 import gen_g4
            d, lds = gen_g4(a); descs.append(d); launches.append(f"; @launch kernel=g4_kernel grid=(256,1,1) block=(256,1,1) lds={lds}")
    probs = check(a.lines)
    for p in probs: print("HAZARD:", p, file=sys.stderr)
    txt = HEADER + "\n".join(launches) + "\n" + '.amdgcn_target "amdgcn-amd-amdhsa--gfx950"\n.text\n' + a.text()
    txt += '.section .rodata,"a"\n' + "".join(".p2align 6\n" + d for d in descs)
    return txt

if __name__ == "__main__":
    ks = sys.argv[2].split(",") if len(sys.argv) > 2 else ["ln","g1","attn","g2","g3","g4"]
    out = sys.argv[1] if len(sys.argv) > 1 else "parallel_sum__mha_block__mixer_s_mlp__prompt.s"
    open(out, "w").write(build(ks))
    print("wrote", out)
```
